```python
import torch

def _softmax(x, axis=-1):
    return torch.softmax(x, dim=axis)
def _gelu(x):
    return torch.nn.functional.gelu(x, approximate="tanh")
def _silu(x):
    return torch.nn.functional.silu(x)
def _sigmoid(x):
    return torch.sigmoid(x)
def _layernorm(x, axis=-1, eps=1e-5):
    m = x.mean(dim=axis, keepdim=True)
    v = x.var(dim=axis, keepdim=True, unbiased=False)
    return (x - m) / torch.sqrt(v + eps)
def _scatter_add(tgt, idx, src, axis=0):
    return tgt.clone().index_add_(axis, idx, src)
def _segment_sum(src, seg, n):
    out = torch.zeros((n,) + src.shape[1:], dtype=src.dtype)
    return out.index_add_(0, seg, src)
def _pad(x, pw):
    flat = tuple(v for pair in reversed(pw) for v in pair)
    return torch.nn.functional.pad(x, flat)

kernel_name = 'recurrent_scan__sliding_block__dense_activation_relu__prompt'

def setup_inputs():

    _w = (lambda a: (lambda t: t.to(torch.bfloat16) if t.is_floating_point() else t)(torch.as_tensor(a)))
    def _A_setup():
        B, S, D = 1, 2048, 640
        return {
            "x": _w((lambda *s: torch.randn(*s, dtype=torch.bfloat16) * 0.05)(B, S, D)),
            "wqkv": _w((lambda *s: torch.randn(*s, dtype=torch.bfloat16) * 0.05)(D, 3 * D)),
            "wo": _w((lambda *s: torch.randn(*s, dtype=torch.bfloat16) * 0.05)(D, D)),
        }
    _A_in = _A_setup()

    def _B_setup():
        B, S, D, Dff = 1, 2048, 640, 1728
        return {
            "x": _w((lambda *s: torch.randn(*s, dtype=torch.bfloat16) * 0.05)(B, S, D)),
            "w1": _w((lambda *s: torch.randn(*s, dtype=torch.bfloat16) * 0.05)(D, Dff)),
            "w2": _w((lambda *s: torch.randn(*s, dtype=torch.bfloat16) * 0.05)(Dff, D)),
        }
    _B_in = _B_setup()

    return {
        "A_x": _A_in["x"],
        "A_wqkv": _A_in["wqkv"],
        "A_wo": _A_in["wo"],
        "B_x": _B_in["x"],
        "B_w1": _B_in["w1"],
        "B_w2": _B_in["w2"],
    }

def reference(A_x, A_wqkv, A_wo, B_x, B_w1, B_w2):
    def _A_ref(x, wqkv, wo):
        B, S, D = x.shape
        H = 32; Dh = D // H; W = 256
        qkv = (lambda x, *d: x.permute(*d))((x @ wqkv).reshape(B, S, 3, H, Dh), 2, 0, 3, 1, 4)
        q, k, v = qkv[0], qkv[1], qkv[2]
        scores = torch.einsum("bhqd,bhkd->bhqk", q, k) * (Dh ** -0.5)
        idx = torch.arange(S)
        mask = (idx[:, None] - idx[None, :] >= 0) & (idx[:, None] - idx[None, :] < W)
        scores = torch.where(mask[None, None], scores, -1e9)
        p = _softmax(scores, axis=-1)
        o = torch.einsum("bhqk,bhkd->bhqd", p, v)
        return (lambda x, *d: x.permute(*d))(o, 0, 2, 1, 3).reshape(B, S, D) @ wo

    def _B_ref(x, w1, w2):
        h = torch.einsum("bsd,df->bsf", x, w1)
        zero = torch.zeros_like(h)
        h = torch.maximum(h, zero)
        return torch.einsum("bsf,fd->bsd", h, w2)

    x = A_x
    xn = _layernorm(x, axis=-1)
    s = _A_ref(xn, A_wqkv, A_wo)
    g = _silu(_B_ref(xn, B_w1, B_w2))
    return x + s * g
```

```python
import re

class Ins:
    __slots__ = ("text", "opt")
    def __init__(self, text, opt=False):
        self.text = text; self.opt = opt

def _regs(tok):
    tok = tok.strip()
    tok = tok.lstrip("-").replace("abs(", "").replace(")", "").replace("|", "")
    m = re.fullmatch(r"([vs])(\d+)", tok)
    if m: return [(m.group(1), int(m.group(2)))]
    m = re.fullmatch(r"([vs])\[(\d+):(\d+)\]", tok)
    if m: return [(m.group(1), i) for i in range(int(m.group(2)), int(m.group(3)) + 1)]
    if tok == "vcc": return [("s", 106), ("s", 107)]
    if tok == "vcc_lo": return [("s", 106)]
    if tok == "vcc_hi": return [("s", 107)]
    if tok == "m0": return [("s", 124)]
    if tok == "exec": return [("s", 126), ("s", 127)]
    if tok == "exec_lo": return [("s", 126)]
    if tok == "exec_hi": return [("s", 127)]
    return []

TRANS = ("v_exp_f32", "v_log_f32", "v_rcp_f32", "v_rsq_f32", "v_sqrt_f32", "v_sin_f32", "v_cos_f32")
def mfma_passes(op):
    if "4x4x4" in op: return 2
    if "16x16" in op: return 4
    return 8

def decode(text):
    t = text.split(";")[0].strip()
    if not t or t.endswith(":") or t.startswith("."): return None
    parts = t.split(None, 1)
    op = parts[0]
    rest = parts[1] if len(parts) > 1 else ""
    ops = [x.strip() for x in rest.split(",")] if rest else []
    if ops:
        last = ops[-1].split()
        ops[-1] = last[0] if last else ""
        mods = last[1:]
    else: mods = []
    R = [_regs(x) for x in ops]
    d = dict(op=op, defs=[], uses=[], kind="other", mods=mods, srcc=[], ab=[], sdata=[])
    flat = lambda L: [r for x in L for r in x]
    if op.startswith("v_mfma"):
        d.update(kind="mfma", defs=R[0], ab=R[1] + R[2], srcc=R[3], uses=R[1] + R[2] + R[3], passes=mfma_passes(op))
    elif op.startswith("v_cmp"):
        d.update(kind="valu", defs=R[0], uses=flat(R[1:]))
    elif op.startswith("v_readfirstlane") or op.startswith("v_readlane"):
        d.update(kind="valu", defs=R[0], uses=flat(R[1:]), lane=True)
    elif op.startswith("v_permlane"):
        d.update(kind="valu", defs=R[0] + R[1], uses=R[0] + R[1], perm=True)
    elif op.startswith("v_"):
        defs = R[0]; uses = flat(R[1:])
        if op.startswith(("v_add_co", "v_sub_co", "v_addc_co", "v_subb_co")):
            defs = R[0] + R[1]; uses = flat(R[2:])
        if op.startswith(("v_fmac", "v_dot2c", "v_pk_fmac")): uses = uses + R[0]
        if op.startswith("v_cndmask") and len(ops) == 3: uses = uses + _regs("vcc")
        d.update(kind="valu", defs=defs, uses=uses, trans=op.replace("_e32", "").replace("_e64", "") in TRANS, dpp=("dpp" in op))
        if "sdwa" in op and any(m.startswith("dst_sel") and "DWORD" not in m for m in mods): d["opsel"] = True
    elif op.startswith("ds_read"):
        d.update(kind="ds", defs=R[0], uses=R[1])
    elif op.startswith("ds_write") or op.startswith("ds_add"):
        d.update(kind="ds", uses=flat(R))
    elif op.startswith("buffer_load") or op.startswith("global_load"):
        if "lds" in mods: d.update(kind="vmem", uses=flat(R) + _regs("m0"), dma=True)
        else: d.update(kind="vmem", defs=R[0], uses=flat(R[1:]))
    elif op.startswith("buffer_store") or op.startswith("buffer_atomic"):
        d.update(kind="vmem", uses=flat(R), sdata=R[0] if len(R[0]) >= 3 else [])
    elif op.startswith("global_store"):
        d.update(kind="vmem", uses=flat(R), sdata=R[1] if len(R[1]) >= 3 else [])
    elif op == "s_nop":
        d.update(kind="nop", n=int(ops[0], 0) + 1)
    elif op.startswith("s_"):
        if op.startswith(("s_cmp", "s_cbranch", "s_branch", "s_waitcnt", "s_barrier", "s_endpgm", "s_sleep", "s_setprio", "s_bitcmp")):
            d.update(kind="salu", uses=flat(R))
        else:
            d.update(kind="salu", defs=R[0] if R else [], uses=flat(R[1:]))
            if "saveexec" in op: d["defs"] = d["defs"] + _regs("exec")
    else:
        raise ValueError("cannot decode: " + text)
    return d

def need_states(p, c):
    n = 0
    pd = set(p["defs"]); cu = set(c["uses"]); cd = set(c["defs"])
    pv = {r for r in pd if r[0] == "v"}; ps = {r for r in pd if r[0] == "s"}
    if p["kind"] == "valu":
        if c["kind"] == "mfma" and pv & cu: n = max(n, 2)
        if c["kind"] == "mfma" and ps & {("s", 126), ("s", 127)}: n = max(n, 4)
        if c["kind"] == "valu":
            if c.get("perm") and pv & cu: n = max(n, 2)
            if c.get("dpp") and pv & cu: n = max(n, 2)
            if c.get("lane") and pv & cu: n = max(n, 1)
            if p.get("trans") and pv & cu: n = max(n, 1)
            if p.get("opsel") and pv & (cu | cd): n = max(n, 1)
            if ps & cu: n = max(n, 4 if c.get("lane") else 2)
        if c["kind"] == "vmem" and ps & cu: n = max(n, 5)
        if c["kind"] == "salu" and ps & cu: n = max(n, 1)
    if p["kind"] == "mfma":
        P = p["passes"]; raw = {2: 5, 4: 8, 8: 12}[P]
        if c["kind"] == "mfma":
            if pv & set(c["ab"]): n = max(n, raw)
            if pv & set(c["srcc"]):
                if set(c["srcc"]) == pv and c["passes"] == P: n = max(n, 2 if P == 2 else 0)
                else: n = max(n, {2: 4, 4: 6, 8: 10}[P])
            elif pv & cd: n = max(n, {2: 4, 4: 6, 8: 10}[P])
        elif c["kind"] in ("valu", "ds", "vmem"):
            if pv & (cu | cd): n = max(n, raw)
        if c["kind"] == "valu" and set(p["srcc"]) & cd: n = max(n, {2: 1, 4: 3, 8: 7}[P])
    if p["kind"] == "vmem" and p["sdata"] and set(p["sdata"]) & cd: n = max(n, 2)
    if p["kind"] == "salu" and ("s", 124) in pd and c.get("dma"): n = max(n, 1)
    return n

class K:
    def __init__(self):
        self.ins = []
        self.vmq = []
        self.lgq = []
        self.opt = False
        self.nlabel = 0
    def e(self, text):
        for l in text.split("\n"):
            l = l.strip()
            if l: self.ins.append(Ins(l, self.opt))
    def label(self, base="L"):
        self.nlabel += 1
        return f"{base}_{self.nlabel}"
    def vm(self, text, tag):
        self.e(text); self.vmq.append(tag)
    def lg(self, text, tag):
        self.e(text); self.lgq.append(tag)
    def _wait(self, q, tags, cap):
        if isinstance(tags, str): tags = [tags]
        idx = -1
        for i, t in enumerate(q):
            if t in tags: idx = i
        if idx < 0: return None
        n = len(q) - 1 - idx
        n = min(n, cap)
        del q[:len(q) - n]
        return n
    def wait(self, vm=None, lg=None, vm_all=False, lg_all=False):
        a = b = None
        if vm_all: a = 0; self.vmq = []
        elif vm is not None: a = self._wait(self.vmq, vm, 63)
        if lg_all:
            b = 0 if self.lgq or lg_all == "force" else None
            self.lgq = []
        elif lg is not None: b = self._wait(self.lgq, lg, 15)
        s = []
        if a is not None: s.append(f"vmcnt({a})")
        if b is not None: s.append(f"lgkmcnt({b})")
        if s: self.e("s_waitcnt " + " ".join(s))
    def state(self): return (list(self.vmq), list(self.lgq))
    def set_state(self, st): self.vmq, self.lgq = list(st[0]), list(st[1])
    def text(self, verbose=False):
        out = []; hist = []
        npad = 0
        for I in self.ins:
            d = decode(I.text)
            if d is None:
                out.append(I.text); continue
            need = 0; dist = 0
            for (p, st) in reversed(hist):
                if dist >= 12: break
                r = need_states(p, d)
                if r - dist > need: need = r - dist
                dist += st
            if need > 0:
                out.append(f"s_nop {need-1}"); npad += 1
                if verbose: print(f"pad {need} before: {I.text}")
                hist.append((decode(f"s_nop {need-1}"), 0 if I.opt else need))
            out.append(I.text)
            st = d["n"] if d["kind"] == "nop" else 1
            hist.append((d, 0 if I.opt else st))
            if len(hist) > 200: hist = hist[-100:]
        return "\n".join(out) + "\n", npad

def spread(main_groups, fillers):
    n = len(main_groups); m = len(fillers); k = 0
    res = []
    for i, g in enumerate(main_groups):
        upto = (m * (i + 1)) // n
        res.append(g + fillers[k:upto]); k = upto
    return res
```

```python
import struct, math
def f2h(x): return hex(struct.unpack("<I", struct.pack("<f", x))[0])

def attention(k, cfg, stamp, poll, flag_store, w0_begin, w0_end, run):
    import gen as G
    from gen import srd, sW, sWR, sT, sRB, sCB, sW1K, sNON, sA, sB, sC, sD, sE, sRA, sAP, sMK, sR3, sC3, sAO, sBO
    from gen import SX, SWS, SOUT, WS_A, WS_B, F_H, F_O, OOB, XREG
    e = k.e
    vQ1, vQ2 = 36, 40
    vK1a, vK2a, vVa, vM, vT, vDl = 1, 2, 3, 4, 5, 7
    vMK, vP0 = 16, 24
    vK1 = [96, 100, 104]; vK2 = [42, 44, 46]; vV = [48, 56]; vO = 112; vS = 128
    vDA, vDB = 8, 9
    def S(b): return vS + 16 * b
    e(f"s_and_b32 s{sA}, s2, 7\ns_lshr_b32 s{sB}, s2, 3\ns_lshr_b32 s{sR3}, s{sA}, 1\ns_lshl_b32 s{sR3}, s{sR3}, 3\ns_and_b32 s{sC}, s{sB}, 7\ns_add_u32 s{sR3}, s{sR3}, s{sC}")
    e(f"s_and_b32 s{sC3}, s{sA}, 1\ns_lshl_b32 s{sC3}, s{sC3}, 2\ns_lshr_b32 s{sB}, s{sB}, 3\ns_add_u32 s{sC3}, s{sC3}, s{sB}")
    e(f"s_mul_i32 s{sAO}, s{sR3}, {74*4096}\ns_add_u32 s{sAO}, s{sAO}, {WS_A}\ns_mul_i32 s{sBO}, s{sC3}, {74*5120}\ns_add_u32 s{sBO}, s{sBO}, {WS_B}")
    sW1280 = 59
    e(f"s_mul_i32 s{sW1280}, s{sW}, 1280\nv_lshlrev_b32 v{vT}, 4, v0\nv_add_u32 v{vDA}, s{sW1K}, v{vT}\nv_add_u32 v{vDB}, s{sW1280}, v{vT}")
    def pos(i):
        i %= 8
        return XREG + 18432 * i if i < 5 else 18432 * (i - 5)
    def dma_a(i):
        e(f"s_add_u32 s{sA}, s{sAO}, {8192*i}\ns_add_u32 m0, s{sW1K}, {pos(i)}\ns_nop 0")
        k.vm(f"buffer_load_dwordx4 v{vDA}, {srd(SWS)}, s{sA} offen sc1 lds", f"A{i}")
    def dma_b(i):
        e(f"s_add_u32 m0, s{sW1280}, {pos(i) + 8192}\ns_add_u32 s{sA}, s{sBO}, {10240*i}\ns_mov_b32 exec_hi, 0xff")
        k.vm(f"buffer_load_dwordx4 v{vDB}, {srd(SWS)}, s{sA} offen sc1 lds", f"B{i}")
        k.vm(f"buffer_load_dwordx4 v{vDB}, {srd(SWS)}, s{sA} offen offset:640 sc1 lds", f"B{i}")
        e("s_mov_b32 exec_hi, -1")
    e(f"v_and_b32 v10, 31, v0\nv_lshrrev_b32 v11, 5, v0\ns_lshl_b32 s{sA}, s{sWR}, 9\nv_lshl_add_u32 v12, v10, 4, s{sA}")
    e(f"s_mul_i32 s{sA}, s{sT}, 3\nv_add_u32 v13, s{sA}, v11\nv_mul_u32_u24 v13, 6144, v13\nv_add_u32 v{vK1a}, v13, v12")
    e(f"s_lshl_b32 s{sA}, s{sT}, 3\ns_add_u32 s{sA}, s{sA}, 12288\nv_add_u32 v{vK2a}, s{sA}, v12")
    e(f"v_mul_u32_u24 v13, 40, v11\nv_add_u32 v13, v13, v10\ns_mul_i32 s{sA}, s{sT}, 320\ns_mul_i32 s{sB}, s{sWR}, 2560\ns_add_u32 s{sA}, s{sA}, s{sB}\ns_add_u32 s{sA}, s{sA}, 32768\nv_lshl_add_u32 v{vVa}, v13, 4, s{sA}")
    e(f"v_lshlrev_b32 v13, 2, v11\nv_sub_u32 v{vDl}, v10, v13")
    for i in range(16): e(f"v_mov_b32 v{vV[0]+i}, 0x3f803f80")
    sQB = 58
    e(f"s_lshl_b32 s{sQB}, s{sRA}, 2\ns_add_u32 s{sQB}, s{sQB}, s{sWR}")
    sVM = 56
    e(f"s_mov_b32 s{sVM}, 0xfffff\ns_mov_b32 s{sVM+1}, 0xfffff\nv_mov_b32 v6, 0xffff")
    def cval(q): return 8 * (q >> 2) + (q & 3)
    for q in range(8):
        m0, m1 = sMK + 4 * (q % 2), sMK + 4 * (q % 2) + 2
        e(f"v_cmp_le_i32 s[{m0}:{m0+1}], {cval(2*q)}, v{vDl}\nv_cmp_le_i32 s[{m1}:{m1+1}], {cval(2*q+1)}, v{vDl}")
        if q > 0:
            p0, p1 = sMK + 4 * ((q - 1) % 2), sMK + 4 * ((q - 1) % 2) + 2
            e(f"v_cndmask_b32 v{vMK+q-1}, 0, v6, s[{p0}:{p0+1}]\nv_cndmask_b32 v{vMK+q-1}, v{vMK+q-1}, -1, s[{p1}:{p1+1}]")
    e(f"v_cndmask_b32 v{vMK+7}, 0, v6, s[{sMK+4}:{sMK+5}]\nv_cndmask_b32 v{vMK+7}, v{vMK+7}, -1, s[{sMK+6}:{sMK+7}]")
    k.wait(vm="KV"); e("s_barrier")
    stamp()
    for i in range(5): dma_b(i)
    order = [0, 8, 1, 2, 3, 4, 5, 6, 7]
    buf = {0: 0, 8: 7, **{j: j for j in range(1, 8)}}
    def kread(n):
        if n >= 9: return
        jj = order[n]
        k.lg(f"ds_read_b64 v[{vK2[n%3]}:{vK2[n%3]+1}], v{vK2a} offset:{jj*512}", f"K{n}")
        k.lg(f"ds_read_b128 v[{vK1[n%3]}:{vK1[n%3]+3}], v{vK1a} offset:{jj*512}", f"K{n}")
    fixes = []
    def fix(jj):
        Lf, Lb = k.label("Lfx"), k.label("Lfb")
        e(f"s_cmp_lt_u32 s{sQB}, {8-jj}\ns_cbranch_scc1 {Lf}\n{Lb}:")
        fixes.append((Lf, Lb, S(buf[jj])))
    def maxops(b, first):
        s = S(b); L = []
        if first: L.append(f"v_max3_f32 v{vM}, v{s}, v{s+1}, v{s+2}"); L.append(f"v_max3_f32 v{vT}, v{s+3}, v{s+4}, v{s+5}"); r = 6
        else: r = 0
        t = [vM, vT]; i = 0
        while r < 16:
            L.append(f"v_max3_f32 v{t[i%2]}, v{s+r}, v{s+r+1}, v{t[i%2]}"); r += 2; i += 1
        return L
    def merge():
        a, b = S(0), S(7); L = []
        for q in range(16):
            m = sMK + 2 * (q % 4)
            L.append(f"v_cmp_le_i32 s[{m}:{m+1}], {cval(q)}, v{vDl}")
            if q >= 2:
                mm = sMK + 2 * ((q - 2) % 4); L.append(f"v_cndmask_b32 v{a+q-2}, v{a+q-2}, v{b+q-2}, s[{mm}:{mm+1}]")
        for q in (14, 15):
            mm = sMK + 2 * (q % 4); L.append(f"v_cndmask_b32 v{a+q}, v{a+q}, v{b+q}, s[{mm}:{mm+1}]")
        return L
    kread(0); kread(1)
    for n in range(9):
        kread(n + 2); k.wait(lg=f"K{n}")
        s = S(buf[order[n]])
        e(f"v_mfma_f32_32x32x8_bf16 v[{s}:{s+15}], v[{vK2[n%3]}:{vK2[n%3]+1}], v[{vQ2}:{vQ2+1}], 0")
        e(f"v_mfma_f32_32x32x16_bf16 v[{s}:{s+15}], v[{vK1[n%3]}:{vK1[n%3]+3}], v[{vQ1}:{vQ1+3}], v[{s}:{s+15}]")
        if n == 2: fix(0); run(merge())
        if n == 3: run(maxops(0, True))
        if n >= 4: fix(order[n - 2]); run(maxops(buf[order[n - 2]], False))
    def vread(jj, b):
        e(f"s_mov_b64 exec, s[{sVM}:{sVM+1}]")
        for g in range(2): k.lg(f"ds_read_b128 v[{vV[b]+4*g}:{vV[b]+4*g+3}], v{vVa} offset:{(2*jj+g)*1280}", f"V{jj}")
        e("s_mov_b64 exec, -1")
    vread(8, 0); vread(0, 1)
    fix(6); run(maxops(6, False)); fix(7); run(maxops(7, False))
    e(f"v_max_f32 v{vM}, v{vM}, v{vT}\nv_mov_b32 v{vT}, v{vM}\nv_permlane32_swap_b32 v{vT}, v{vM}\nv_max_f32 v{vM}, v{vM}, v{vT}")
    stamp()
    def softmax_ops(b):
        s = S(b); L = []
        for i in range(16):
            L.append(f"v_sub_f32 v{s+i}, v{s+i}, v{vM}")
        E = []
        for i in range(16): E.append(f"v_exp_f32 v{s+i}, v{s+i}")
        C = [f"v_cvt_pk_bf16_f32 v{s+q}, v{s+2*q}, v{s+2*q+1}" for q in range(8)]
        out = L[:2]
        for i in range(16):
            out.append(E[i])
            if i + 2 < 16: out.append(L[i + 2])
            if i >= 3 and i % 2 == 1: out.append(C[(i - 3) // 2])
        out.append(C[7])
        return out
    def pv(p, b, first=False):
        L = []
        for g in range(2):
            C = "0" if (first and g == 0) else f"v[{vO}:{vO+15}]"
            L.append(f"v_mfma_f32_32x32x16_bf16 v[{vO}:{vO+15}], v[{vV[b]+4*g}:{vV[b]+4*g+3}], v[{p+4*g}:{p+4*g+3}], {C}")
        return L
    def hflag():
        k.wait(vm=["S2", "S3"])
        e(f"s_lshl_b32 s{sA}, s{sRB}, 2\ns_add_u32 s{sA}, s{sA}, s{sWR}\ns_lshl_b32 s{sA}, s{sA}, 1\ns_add_u32 s{sA}, s{sA}, s{sT}\ns_lshl_b32 s{sA}, s{sA}, 4\ns_add_u32 s{sA}, s{sA}, s{sCB}\ns_lshl_b32 s{sA}, s{sA}, 2\ns_add_u32 s{sA}, s{sA}, {F_H}")
        flag_store(10, 11, sA); k.vmq.append("HF")
    def hpoll():
        e(f"s_lshl_b32 s{sA}, s{sR3}, 1\ns_lshr_b32 s{sB}, s{sWR}, 1\ns_add_u32 s{sA}, s{sA}, s{sB}\ns_lshl_b32 s{sA}, s{sA}, 1\ns_add_u32 s{sA}, s{sA}, s{sT}\ns_lshl_b32 s{sA}, s{sA}, 6\ns_add_u32 s{sA}, s{sA}, {F_H}\nv_lshlrev_b32 v10, 2, v0")
        poll(10, 11, f"s{sA}", "0x3fff", "0"); k.vmq = []
        for i in range(5): dma_a(i)
    run(softmax_ops(0))
    s = S(0)
    for q in range(8): e(f"v_and_b32 v{vP0+q}, v{vMK+q}, v{s+q}")
    for q in range(8): e(f"v_xor_b32 v{s+q}, v{s+q}, v{vP0+q}")
    pend = [lambda: k.wait(lg="V8")] + pv(vP0, 0, True) + [lambda: k.wait(lg="V0"), lambda: vread(1, 0)] + pv(s, 1) + [lambda: vread(2, 1)]
    for jj in range(1, 8):
        ops = softmax_ops(jj)
        step = max(1, (len(ops) - 4) // len(pend))
        for i, o in enumerate(ops):
            e(o)
            if pend and i >= 2 and (i - 2) % step == 0: run([pend.pop(0)])
        run(pend)
        b = (jj + 1) % 2
        pend = [lambda jj=jj: k.wait(lg=f"V{jj}")] + pv(S(jj), b)
        if jj + 2 < 8: pend.append(lambda jj=jj, b=b: vread(jj + 2, b))
        if jj == cfg.TFH: hflag()
        if jj == cfg.TPH and cfg.stop != "att": hpoll()
    run(pend)
    e(f"v_bfe_u32 v10, v0, 4, 1\nv_lshlrev_b32 v10, 10, v10\nv_and_b32 v11, 15, v0\nv_lshrrev_b32 v12, 5, v0\nv_lshl_add_u32 v13, v12, 4, v11\nv_lshl_add_u32 v13, v13, 4, v10")
    e(f"v_lshl_add_u32 v11, v11, 3, v10\nv_lshl_add_u32 v11, v12, 30, v11")
    e(f"s_lshr_b32 s{sA}, s{sWR}, 1\ns_lshl_b32 s{sB}, s{sRA}, 1\ns_add_u32 s{sA}, s{sA}, s{sB}\ns_mul_i32 s{sA}, s{sA}, 74\ns_lshl_b32 s{sA}, s{sA}, 1\ns_and_b32 s{sB}, s{sWR}, 1\ns_add_u32 s{sA}, s{sA}, s{sB}\ns_lshl_b32 s{sA}, s{sA}, 11")
    e(f"s_lshl_b32 s{sB}, s{sT}, 9\ns_add_u32 s{sA}, s{sA}, s{sB}\ns_add_u32 s{sA}, s{sA}, {WS_A + 54*4096}")
    e(f"s_lshr_b32 s{sB}, s{sAP}, 2\ns_lshl_b32 s{sB}, s{sB}, 12\ns_and_b32 s{sC}, s{sAP}, 3\ns_lshl_b32 s{sC}, s{sC}, 7\ns_add_u32 s{sB}, s{sB}, s{sC}\ns_add_u32 s{sB}, s{sB}, s{sA}\ns_add_u32 s{sB}, s{sB}, {16*4096}")
    e(f"s_lshl_b32 s{sC}, s{sAP}, 12\ns_add_u32 s{sA}, s{sA}, s{sC}")
    e(f"v_rcp_f32 v{vT}, v{vO+12}")
    for i in range(12): e(f"v_mul_f32 v{vO+i}, v{vO+i}, v{vT}")
    for q in range(6): e(f"v_cvt_pk_bf16_f32 v{vO+q}, v{vO+2*q}, v{vO+2*q+1}")
    k.vm(f"buffer_store_dwordx4 v[{vO}:{vO+3}], v13, {srd(SWS)}, s{sA} offen sc1", "OS")
    k.vm(f"buffer_store_dwordx2 v[{vO+4}:{vO+5}], v11, {srd(SWS)}, s{sB} offen sc1", "OS")
    stamp()
    if cfg.stop == "att":
        e("s_branch L_fin")
    else:
        phase3(k, cfg, stamp, poll, flag_store, w0_begin, w0_end, run, pos, dma_a, dma_b)
        e("s_branch L_fin")
    for Lf, Lb, s in fixes:
        e(f"{Lf}:\ns_nop 15")
        for i in range(16): e(f"v_mov_b32 v{s+i}, 0xff800000")
        e(f"s_branch {Lb}")

def phase3(k, cfg, stamp, poll, flag_store, w0_begin, w0_end, run, pos, dma_a, dma_b):
    from gen import srd, sW, sWR, sT, sW1K, sA, sB, sC, sRA, sAP, sR3, sC3
    from gen import SX, SWS, SOUT, F_O, OOB, XREG
    e = k.e
    NS = 37
    bases = [XREG, XREG + 3 * 18432, 0]
    def bsel(i):
        p = pos(i)
        j = 2 if p < XREG else (0 if p < bases[1] else 1)
        return j, p - bases[j]
    vA, vBo, vBs, vA8 = 10, 13, 16, 19
    vXa, vXv = 22, 24
    vY, vSs = 32, 44
    vF = [64, 92]
    e(f"v_lshlrev_b32 v1, 4, v0\ns_lshl_b32 s{sA}, s{sWR}, 10\ns_mul_i32 s{sB}, s{sT}, 3072\ns_add_u32 s{sB}, s{sB}, 8192\ns_mul_i32 s{sC}, s{sT}, 5120\ns_add_u32 s{sC}, s{sC}, {8192 + 2048}")
    for j in range(3):
        e(f"v_add_u32 v2, {bases[j]}, v1\nv_add_u32 v{vA+j}, s{sA}, v2\nv_add_u32 v{vBo+j}, s{sB}, v2\nv_add_u32 v{vBs+j}, s{sC}, v2")
    j35, _ = bsel(35); j36, _ = bsel(36); assert j35 == j36
    e(f"v_lshlrev_b32 v1, 3, v0\nv_add_u32 v1, s{sA}, v1\nv_add_u32 v{vA8}, {bases[j35]}, v1")
    e(f"v_and_b32 v1, 15, v0\ns_lshl_b32 s{sA}, s{sR3}, 2\ns_add_u32 s{sA}, s{sA}, s{sWR}\ns_lshl_b32 s{sA}, s{sA}, 4\nv_add_u32 v1, s{sA}, v1\nv_mul_u32_u24 v1, 1280, v1")
    e(f"v_lshrrev_b32 v2, 4, v0\nv_lshl_add_u32 v1, v2, 3, v1\ns_mul_i32 s{sA}, s{sC3}, 160\ns_mul_i32 s{sB}, s{sT}, 96\ns_add_u32 s{sA}, s{sA}, s{sB}\nv_add_u32 v{vXa}, s{sA}, v1")
    e(f"s_lshl_b32 s{sB}, s{sT}, 30\nv_add_u32 v{vXa+1}, s{sB}, v{vXa}")
    def reads(i):
        j, o = bsel(i); f = vF[i % 2]; L = []
        for h in range(2):
            if i < 35: L.append(f"ds_read_b128 v[{f+4*h}:{f+4*h+3}], v{vA+j} offset:{o + h*4096}")
            else:
                L.append(f"ds_read_b64 v[{f+4*h}:{f+4*h+1}], v{vA8} offset:{o + h*4096}")
                L.append(f"ds_read_b64 v[{f+4*h+2}:{f+4*h+3}], v{vA8} offset:{o + h*4096 + 512}")
            for c in range(2): L.append(f"ds_read_b128 v[{f+8+8*h+4*c}:{f+11+8*h+4*c}], v{vBo+j} offset:{o + h*5120 + c*1024}")
        L.append(f"ds_read_b128 v[{f+24}:{f+27}], v{vBs+j} offset:{o}")
        return L
    def mfmas(i):
        f = vF[i % 2]; a = vY if i < 27 else vSs; first = i in (0, 27); L = []
        for h in range(2):
            for c in range(2):
                C = "0" if (first and h == 0) else f"v[{a+4*c}:{a+4*c+3}]"
                L.append(f"v_mfma_f32_16x16x32_bf16 v[{a+4*c}:{a+4*c+3}], v[{f+8+8*h+4*c}:{f+11+8*h+4*c}], v[{f+4*h}:{f+4*h+3}], {C}")
        return L
    def shared(i):
        f = vF[i % 2]; a = (vY if i < 27 else vSs) + 8
        C = "0" if i in (0, 27) else f"v[{a}:{a+3}]"
        L0, L1 = k.label("Lsh"), k.label("Lsi")
        e(f"s_cbranch_vccz {L0}"); k.opt = True
        e(f"v_mfma_f32_16x16x32_bf16 v[{a}:{a+3}], v[{f+24}:{f+27}], v[{f}:{f+3}], {C}")
        k.opt = False; e(f"{L0}:\ns_cbranch_vccnz {L1}"); k.opt = True
        e(f"v_mfma_f32_16x16x32_bf16 v[{a}:{a+3}], v[{f+24}:{f+27}], v[{f+4}:{f+7}], {C}")
        k.opt = False; e(f"{L1}:")
    setvcc = f"s_cmp_eq_u32 s{sT}, 0\ns_cselect_b64 vcc, -1, 0"
    e(setvcc)
    for i in range(NS + 1):
        if i < NS:
            if i == 20:
                L = w0_begin()
                e(f"s_lshr_b32 s{sA}, s{sR3}, 1\ns_lshl_b32 s{sA}, s{sA}, 7\ns_add_u32 s{sA}, s{sA}, {F_O}\nv_lshlrev_b32 v1, 2, v0")
                poll(1, 2, f"s{sA}", "0xffff", "0"); e(setvcc); w0_end(L)
            tags = [f"A{i}", f"B{i}"] + (["OS"] if i == cfg.FO else [])
            k.wait(vm=tags, lg_all=True); e("s_barrier")
            if i == 27 or i == 0: stamp()
            for n in ([5, 6, 7] if i == 0 else [i + 7]):
                if n < NS: dma_a(n); dma_b(n)
            if i == cfg.FO:
                L = w0_begin()
                e(f"s_lshl_b32 s{sA}, s{sRA}, 5\ns_add_u32 s{sA}, s{sA}, s{sAP}\ns_lshl_b32 s{sA}, s{sA}, 2\ns_add_u32 s{sA}, s{sA}, {F_O}")
                flag_store(1, 2, sA); w0_end(L)
            if i == 30:
                for c in range(2): k.vm(f"buffer_load_dwordx2 v[{vXv+2*c}:{vXv+2*c+1}], v{vXa}, {srd(SX)}, 0 offen offset:{32*c}", "XV")
                k.vm(f"buffer_load_dwordx2 v[{vXv+4}:{vXv+5}], v{vXa+1}, {srd(SX)}, 0 offen offset:64", "XV")
            R = reads(i)
        else:
            k.wait(lg_all=True); R = []
        M = mfmas(i - 1) if i > 0 else []
        for r in R[:2]: k.lg(r, "R")
        rest = R[2:]
        for q, m in enumerate(M):
            e(m)
            for r in rest[:2]: k.lg(r, "R")
            rest = rest[2:]
        for r in rest: k.lg(r, "R")
        if i > 0: shared(i - 1)
    stamp()
    e(f"v_lshlrev_b32 v1, 4, v0\ns_lshl_b32 s{sA}, s{sW}, 11\nv_add_u32 v2, s{sA}, v1\ns_xor_b32 s{sA}, s{sA}, 8192\nv_add_u32 v1, s{sA}, v1")
    k.lg(f"ds_write_b128 v2, v[{vY+8}:{vY+11}]", "w"); k.lg(f"ds_write_b128 v2, v[{vSs+8}:{vSs+11}] offset:1024", "w")
    k.wait(lg_all=True); e("s_barrier")
    k.lg(f"ds_read_b128 v[64:67], v1", "r"); k.lg(f"ds_read_b128 v[68:71], v1 offset:1024", "r")
    def fin(c):
        y, s, x = vY + 4 * c, vSs + 4 * c, vXv + 2 * c; t = 72 + 8 * c
        for i in range(4): e(f"v_mul_f32 v{t+i}, {f2h(-math.log2(math.e))}, v{y+i}")
        for i in range(4): e(f"v_exp_f32 v{t+i}, v{t+i}")
        for i in range(4): e(f"v_mul_f32 v{s+i}, v{s+i}, v{y+i}")
        for i in range(4): e(f"v_add_f32 v{t+i}, 1.0, v{t+i}")
        for i in range(4): e(f"v_rcp_f32 v{t+i}, v{t+i}")
        e(f"v_lshlrev_b32 v{t+4}, 16, v{x}\nv_and_b32 v{t+5}, 0xffff0000, v{x}\nv_lshlrev_b32 v{t+6}, 16, v{x+1}\nv_and_b32 v{t+7}, 0xffff0000, v{x+1}")
        for i in range(4): e(f"v_fmac_f32 v{t+4+i}, v{s+i}, v{t+i}")
        e(f"v_cvt_pk_bf16_f32 v{t}, v{t+4}, v{t+5}\nv_cvt_pk_bf16_f32 v{t+1}, v{t+6}, v{t+7}")
        va, off = (vXa, 32 * c) if c < 2 else (vXa + 1, 64)
        e(f"buffer_store_dwordx2 v[{t}:{t+1}], v{va}, {srd(SOUT)}, 0 offen offset:{off}")
    k.wait(vm="XV")
    fin(0); fin(1)
    k.wait(lg_all=True)
    for i in range(4): e(f"v_add_f32 v{vY+8+i}, v{vY+8+i}, v{64+i}\nv_add_f32 v{vSs+8+i}, v{vSs+8+i}, v{68+i}")
    fin(2)
```

```python
import sys, math
from asmlib import K, spread

NAME = "recurrent_scan__sliding_block__dense_activation_relu__prompt_kernel"
WS_Q, WS_K, WS_V = 0x0, 0x280000, 0x500000
WS_A, WS_B, WS_F, WS_T, WS_SIZE = 0x800000, 0x1200000, 0x1600000, 0x1700000, 0x1800000
F_QKV, F_O, F_W, F_H = WS_F, WS_F + 2048, WS_F + 4096, WS_F + 8192
OOB = 0x40000000
XREG = 65536
MISC = 157696
EX, EXC, RS = MISC, MISC + 2048, MISC + 3072
SPIN = 400000

SX, SWQ, SW1, SWS, SOUT, SDBG, SW2, SWO = 4, 8, 12, 16, 20, 24, 28, 32
def srd(b): return f"s[{b}:{b+3}]"
sW, sWR, sT, sRB, sCB, sW1K, sNON = 36, 37, 38, 39, 40, 41, 42
sA, sB, sC, sD, sE = 43, 44, 45, 46, 47
sRA, sAP = 48, 49
sKT = 50
sP = [60, 61, 62, 63]
sMK = 64
sR3, sC3, sAO, sBO = 60, 61, 62, 63
sST = 72

class Cfg:
    stop = None
    stamps = False
    FQ = 32
    PQ = 36
    TFH = 4
    TPH = 6
    FO = 7
    prefetch_code = True

def build(cfg):
    k = K(); e = k.e
    nst = [0]
    def stamp():
        if cfg.stamps and nst[0] < 15:
            e(f"s_memtime s[{sST+2*nst[0]}:{sST+2*nst[0]+1}]"); nst[0] += 1
    def w0_begin():
        L = k.label("Lw0"); e(f"s_cmp_lg_u32 s{sW}, 0\ns_cbranch_scc1 {L}"); k.opt = True; return L
    def w0_end(L):
        k.opt = False; e(f"{L}:")
    def poll(vaddr, vtmp, soff, execmask_lo, execmask_hi, dst_srd=SWS):
        L = k.label("Lpoll"); Ld = k.label("Lpd")
        e(f"s_mov_b32 exec_lo, {execmask_lo}\ns_mov_b32 exec_hi, {execmask_hi}\ns_mov_b32 s{sE}, 0")
        e(f"{L}:\nbuffer_load_dword v{vtmp}, v{vaddr}, {srd(dst_srd)}, {soff} offen sc1")
        e(f"s_add_u32 s{sE}, s{sE}, 1\ns_waitcnt vmcnt(0)\nv_cmp_ne_u32 vcc, s{sNON}, v{vtmp}")
        e(f"s_cmp_gt_u32 s{sE}, {SPIN}\ns_cbranch_scc1 {Ld}\ns_nop 1\ns_cbranch_vccnz {L}\n{Ld}:\ns_mov_b64 exec, -1")
    def get_nonce(vtmp, vz):
        L = k.label("Lnon"); Ld = k.label("Lnd")
        e(f"v_readfirstlane_b32 s{sNON}, v{vtmp}\ns_mov_b32 s{sE}, 0\ns_nop 0\ns_cmp_lg_u32 s{sNON}, 0\ns_cbranch_scc1 {Ld}")
        k.opt = True
        e(f"v_mov_b32 v{vz}, 0\n{L}:\nbuffer_load_dword v{vtmp}, v{vz}, {srd(SDBG)}, 0 offen sc1\ns_add_u32 s{sE}, s{sE}, 1\ns_waitcnt vmcnt(0)")
        e(f"v_readfirstlane_b32 s{sNON}, v{vtmp}\ns_cmp_gt_u32 s{sE}, {SPIN}\ns_cbranch_scc1 {Ld}\ns_nop 0\ns_cmp_eq_u32 s{sNON}, 0\ns_cbranch_scc1 {L}")
        k.opt = False
        e(f"{Ld}:")
    def flag_store(vt, vt2, soff_sgpr):
        e(f"v_mov_b32 v{vt}, s{sNON}\nv_mov_b32 v{vt2}, 0\ns_mov_b64 exec, 1")
        e(f"buffer_store_dword v{vt}, v{vt2}, {srd(SWS)}, s{soff_sgpr} offen sc1\ns_mov_b64 exec, -1")

    e(f"s_cmp_ge_u32 s2, 256\ns_cbranch_scc1 L_end")
    stamp()
    for b, off in ((SX, 0), (SWQ, 8), (SWS, 64), (SW1, 32), (SDBG, 56), (SOUT, 48), (SW2, 40), (SWO, 16)):
        e(f"s_load_dwordx2 s[{b}:{b+1}], s[0:1], {off}")
    e(f"v_lshrrev_b32 v1, 6, v0\nv_and_b32 v0, 63, v0")
    e(f"s_and_b32 s{sA}, s2, 7\ns_lshr_b32 s{sB}, s2, 3")
    e(f"v_readfirstlane_b32 s{sW}, v1")
    if cfg.prefetch_code:
        Lp = k.label("Lpc")
        e(f"s_getpc_b64 s[{sKT}:{sKT+1}]\n{Lp}:\ns_lshl_b32 s{sC}, s{sB}, 11\nv_lshlrev_b32 v2, 7, v0\nv_add_u32 v2, s{sC}, v2")
        e(f"v_min_u32 v2, L_end-{Lp}, v2\ns_mov_b64 exec, 0xffff")
        k.vm(f"global_load_dword v255, v2, s[{sKT}:{sKT+1}]", "code")
        e("s_mov_b64 exec, -1")
    e(f"s_and_b32 s{sC}, s{sB}, 7\ns_lshr_b32 s{sD}, s{sB}, 3")
    e(f"s_lshr_b32 s{sRB}, s{sA}, 2\ns_lshl_b32 s{sRB}, s{sRB}, 3\ns_add_u32 s{sRB}, s{sRB}, s{sC}")
    e(f"s_and_b32 s{sCB}, s{sA}, 3\ns_lshl_b32 s{sCB}, s{sCB}, 2\ns_add_u32 s{sCB}, s{sCB}, s{sD}")
    e(f"s_lshl_b32 s{sD}, s{sD}, 1\ns_add_u32 s{sC}, s{sC}, s{sD}")
    e(f"s_lshr_b32 s{sRA}, s{sB}, 1\ns_and_b32 s{sAP}, s{sB}, 1\ns_lshl_b32 s{sA}, s{sA}, 1\ns_add_u32 s{sAP}, s{sAP}, s{sA}")
    e(f"s_and_b32 s{sWR}, s{sW}, 3\ns_lshr_b32 s{sT}, s{sW}, 2\ns_lshl_b32 s{sW1K}, s{sW}, 10")
    if cfg.prefetch_code: e("s_nop 0")
    for i in range(10):
        e(f"s_add_u32 s{sD}, s{sC}, {i}\ns_cmp_ge_u32 s{sD}, 10\ns_cselect_b32 s{sE}, 10, 0\ns_sub_u32 s{sD}, s{sD}, s{sE}")
        e(f"s_cmp_ge_u32 s{sD}, 10\ns_cselect_b32 s{sE}, 10, 0\ns_sub_u32 s{sD}, s{sD}, s{sE}\ns_lshl_b32 s{sKT+i}, s{sD}, 7")
    sizes = {SX: 2621440, SWQ: 2457600, SW1: 2211840, SWS: WS_SIZE, SOUT: 2621440, SDBG: 256, SW2: 2211840, SWO: 819200}
    for b, n in sizes.items():
        e(f"s_mov_b32 s{b+2}, {n}\ns_mov_b32 s{b+3}, 0x20000")
    vXa, vWq, vW1, vXr, vWr, vWc, vSt, vSh, vEC = 1, 3, 4, 5, 9, 11, 13, 14, 15
    vCS, vU, vCF, vCSF, vMF, vT4, vONE, vRS, vRQ = 16, 18, 20, 24, 26, 28, 32, 34, 35
    vSTAT, vWF, vACC, vX = 36, 52, 64, 96
    e(f"v_lshrrev_b32 v28, 3, v0\nv_and_b32 v29, 7, v0\nv_lshrrev_b32 v30, 4, v0")
    e(f"s_lshl_b32 s{sA}, s{sRB}, 7\ns_lshl_b32 s{sD}, s{sW}, 4\ns_add_u32 s{sA}, s{sA}, s{sD}")
    e(f"v_add_u32 v31, s{sA}, v28\nv_mul_u32_u24 v31, 1280, v31")
    e(f"v_xor_b32 v16, v29, v30\nv_lshl_add_u32 v{vXa}, v16, 4, v31")
    e(f"v_xor_b32 v16, 4, v16\nv_lshl_add_u32 v{vXa+1}, v16, 4, v31\nv_add_u32 v{vXa+1}, {8*1280}, v{vXa+1}")
    e(f"s_lshl_b32 s{sD}, s{sW}, 3\nv_add_u32 v31, s{sD}, v28\nv_and_b32 v16, 1, v30\nv_lshlrev_b32 v16, 2, v16\nv_xor_b32 v16, v16, v29\nv_lshlrev_b32 v16, 4, v16")
    e(f"s_movk_i32 s{sD}, 3840\nv_mad_u32_u24 v{vWq}, v31, s{sD}, v16\ns_movk_i32 s{sD}, 3456\nv_mad_u32_u24 v{vW1}, v31, s{sD}, v16")
    e(f"s_lshl_b32 s{sP[0]}, s{sCB}, 8\ns_add_u32 s{sP[1]}, s{sP[0]}, 128")
    e(f"s_cmp_lt_u32 s{sCB}, 14\ns_cselect_b32 s{sP[2]}, s{sP[0]}, {OOB}\ns_cmp_lt_u32 s{sCB}, 13\ns_cselect_b32 s{sP[3]}, s{sP[1]}, {OOB}")
    e(f"s_cmp_eq_u32 s{sCB}, 15\ns_waitcnt lgkmcnt(0)\ns_cbranch_scc1 L_service")
    st_entry = k.state()

    def wpos(n):
        if n <= 17: return (n % 8) * 8192
        if n <= 25: return XREG + (n - 18) * 8192
        return wpos(n - 16)
    def dma_x(i):
        for h in range(2):
            e(f"s_lshl_b32 s{sA}, s{sW1K}, 1\ns_add_u32 m0, s{sA}, {XREG + (i % 4) * 16384 + h * 1024}")
            k.vm(f"buffer_load_dwordx4 v{vXa+h}, {srd(SX)}, s{sKT+i} offen lds", f"X{i}")
    def dma_w(n):
        p = n // 10
        pitch, sr, va = (3840, SWQ, vWq) if p < 2 else (3456, SW1, vW1)
        e(f"s_mul_i32 s{sA}, s{sKT + n % 10}, {pitch // 2}\ns_add_u32 m0, s{sW1K}, {wpos(n)}\ns_add_u32 s{sA}, s{sA}, s{sP[p]}")
        k.vm(f"buffer_load_dwordx4 v{va}, {srd(sr)}, s{sA} offen lds", f"W{n}")
    for i in range(4):
        dma_x(i); dma_w(i)
    for n in range(4, 8): dma_w(n)
    e(f"v_and_b32 v28, 31, v0\nv_lshrrev_b32 v29, 5, v0")
    e(f"s_lshl_b32 s{sA}, s{sWR}, 12\ns_add_u32 s{sA}, s{sA}, {XREG}\nv_lshl_add_u32 v30, v28, 7, s{sA}")
    e(f"v_bfe_u32 v31, v0, 1, 3\nv_xor_b32 v31, v31, v29\nv_lshl_add_u32 v{vXr}, v31, 4, v30")
    for s in range(1, 4): e(f"v_xor_b32 v{vXr+s}, {32*s}, v{vXr}")
    e(f"v_bfe_u32 v30, v0, 2, 2\nv_lshlrev_b32 v31, 7, v30\nv_lshl_add_u32 v31, v29, 10, v31")
    e(f"v_lshrrev_b32 v30, 1, v30\nv_xor_b32 v30, s{sT}, v30\nv_lshl_add_u32 v31, v30, 6, v31")
    e(f"v_bfe_u32 v30, v0, 4, 1\nv_lshl_add_u32 v31, v30, 5, v31\nv_and_b32 v30, 3, v0\nv_lshl_add_u32 v{vWr}, v30, 3, v31")
    e(f"v_add_u32 v{vWr+1}, {XREG}, v{vWr}\ns_lshl_b32 s{sA}, s{sWR}, 11\nv_add_u32 v{vWc}, s{sA}, v{vWr}\nv_add_u32 v{vWc+1}, s{sA}, v{vWr+1}")
    e(f"s_lshl_b32 s{sA}, s{sT}, 9\ns_add_u32 s{sA}, s{sA}, {EXC}\nv_lshl_add_u32 v{vEC}, v28, 4, s{sA}")
    e(f"v_bfe_u32 v30, v0, 4, 1\nv_lshlrev_b32 v30, 10, v30\nv_and_b32 v31, 15, v0\nv_lshl_add_u32 v31, v29, 4, v31\nv_lshl_add_u32 v{vSh}, v31, 4, v30")
    e(f"v_mov_b32 v{vONE}, 0x3f803f80\nv_mov_b32 v{vONE+1}, 0x3f803f80")
    for i in range(16): e(f"v_mov_b32 v{vSTAT+i}, 0")
    e(f"s_cmp_eq_u32 s{sT}, 0\ns_cselect_b64 vcc, -1, 0")
    e(f"s_cmp_ge_u32 s{sCB}, 10\ns_cbranch_scc1 L_vpath")
    st_p1 = k.state()

    BAR = list(range(0, 13)) + list(range(14, 40, 2))
    def acc(p): return vACC + 16 * (p % 2)
    def wf(n): return vWF + 4 * (n % 3)
    def lds_w(base_reg, n):
        p = wpos(n)
        return (base_reg, p) if p < XREG else (base_reg + 1, p - XREG)
    def reads(n):
        if n >= 160: return
        slot, s = n // 4, n % 4
        if s == 0:
            r, o = lds_w(vWc, slot)
            for rd in range(2): k.lg(f"ds_read_b64_tr_b16 v[{vCF+2*rd}:{vCF+2*rd+1}], v{r} offset:{o + rd*512}", f"C{slot}")
        if n < 40:
            k.lg(f"ds_read_b128 v[{vX+4*n}:{vX+4*n+3}], v{vXr+s} offset:{(slot % 4) * 16384}", f"F{n}")
        r, o = lds_w(vWr, slot)
        for rd in range(2): k.lg(f"ds_read_b64_tr_b16 v[{wf(n)+2*rd}:{wf(n)+2*rd+1}], v{r} offset:{o + s*2048 + rd*512}", f"F{n}")
    def colsum_ops(slot):
        L = []
        for q in range(4):
            first = (slot % 10 == 0 and q == 0)
            if first:
                L += [f"v_lshlrev_b32 v{vCS}, 16, v{vCF}", f"v_and_b32 v{vCS+1}, 0xffff0000, v{vCF}"]
            else:
                L += [f"v_lshlrev_b32 v{vU}, 16, v{vCF+q}", f"v_and_b32 v{vU+1}, 0xffff0000, v{vCF+q}",
                      f"v_add_f32 v{vCS}, v{vCS}, v{vU}", f"v_add_f32 v{vCS+1}, v{vCS+1}, v{vU+1}"]
        return L
    def colsum_write():
        e(f"v_add_f32 v{vCS}, v{vCS}, v{vCS+1}\ns_lshl_b32 s{sA}, s{sWR}, 2\nv_add_u32 v{vU+1}, s{sA}, v{vEC}\nv_mov_b32 v{vU}, v{vCS}")
        e(f"v_permlane32_swap_b32 v{vU}, v{vCS}\nv_add_f32 v{vCS}, v{vCS}, v{vU}")
        k.lg(f"ds_write_b32 v{vU+1}, v{vCS}", "ECw")
    def split_hilo(src, t0, dst, negate):
        if negate:
            return [f"v_sub_f32 v{src}, 0, v{src}", f"v_cvt_pk_bf16_f32 v{dst}, v{src}, v{src}", f"v_and_b32 v{t0}, 0xffff0000, v{dst}",
                    f"v_sub_f32 v{src}, v{src}, v{t0}", f"v_cvt_pk_bf16_f32 v{dst+1}, v{src}, 0"]
        return [f"v_cvt_pk_bf16_f32 v{t0}, v{src}, v{src}", f"v_and_b32 v{t0}, 0xffff0000, v{t0}", f"v_sub_f32 v{src}, v{src}, v{t0}",
                f"v_cvt_pk_bf16_f32 v{dst}, v{t0}, v{src}", f"v_cvt_pk_bf16_f32 v{dst+1}, v{t0}, 0"]
    def cs_build():
        t = vT4
        return [lambda: k.wait(lg="ECr"), f"v_add_f32 v{t}, v{t}, v{t+1}", f"v_add_f32 v{t+2}, v{t+2}, v{t+3}", f"s_mov_b64 s[{sMK}:{sMK+1}], 0xffffffff",
                f"v_add_f32 v{t}, v{t}, v{t+2}", f"v_cndmask_b32 v{t}, 0, v{t}, s[{sMK}:{sMK+1}]"] + split_hilo(t, t + 1, vCSF, False)
    def corr(p, vor):
        a = acc(p); A, B = (vMF, vCSF) if vor else (vCSF, vMF)
        return f"v_mfma_f32_32x32x8_bf16 v[{a}:{a+15}], v[{A}:{A+1}], v[{B}:{B+1}], v[{a}:{a+15}]"
    def epi_valu(p, kind):
        a = acc(p); L = []
        for q in range(8):
            for j in (2 * q, 2 * q + 1):
                sc = vSTAT + j if kind == "v" else (vRQ if kind == "qk" else vRS)
                L.append(f"v_mul_f32 v{a+j}, v{a+j}, v{sc}")
            L.append(f"v_cvt_pk_bf16_f32 v{a+q}, v{a+2*q}, v{a+2*q+1}")
            if kind == "h": L.append(f"v_pk_max_i16 v{a+q}, v{a+q}, 0")
        if kind == "qk":
            L += [f"v_permlane32_swap_b32 v{a+i}, v{a+i+2}" for i in (0, 1, 4, 5)]
        return L
    def epi_stores(p, kind):
        a = acc(p)
        def f():
            if kind == "qk":
                e(f"s_lshl_b32 s{sA}, s{sCB}, 2\ns_add_u32 s{sA}, s{sA}, s{sT}\ns_lshl_b32 s{sA}, s{sA}, 17\ns_add_u32 s{sA}, s{sA}, {p * 262144}\ns_add_u32 s{sB}, s{sA}, 65536")
                k.vm(f"buffer_store_dwordx4 v[{a}:{a+3}], v{vSt}, {srd(SWS)}, s{sA} offen sc1", f"S{p}")
                k.vm(f"buffer_store_dwordx4 v[{a+4}:{a+7}], v{vSt}, {srd(SWS)}, s{sB} offen sc1", f"S{p}")
            elif kind == "v":
                e(f"s_lshl_b32 s{sA}, s{sCB}, 2\ns_add_u32 s{sA}, s{sA}, s{sT}\ns_lshl_b32 s{sA}, s{sA}, 9\ns_add_u32 s{sA}, s{sA}, {WS_V + p * 1024 - 40 * 512}\ns_add_u32 s{sB}, s{sA}, 20480")
                k.vm(f"buffer_store_dwordx4 v[{a}:{a+3}], v{vSt}, {srd(SWS)}, s{sA} offen sc1", f"S{p}")
                k.vm(f"buffer_store_dwordx4 v[{a+4}:{a+7}], v{vSt}, {srd(SWS)}, s{sB} offen sc1", f"S{p}")
            else:
                e(f"s_lshr_b32 s{sA}, s{sWR}, 1\ns_lshl_b32 s{sB}, s{sRB}, 1\ns_add_u32 s{sA}, s{sA}, s{sB}\ns_mul_i32 s{sA}, s{sA}, 74\ns_add_u32 s{sA}, s{sA}, s{sT}\ns_lshl_b32 s{sA}, s{sA}, 1")
                e(f"s_and_b32 s{sB}, s{sWR}, 1\ns_add_u32 s{sA}, s{sA}, s{sB}\ns_lshl_b32 s{sA}, s{sA}, 11\ns_lshl_b32 s{sB}, s{sP[p]}, 6\ns_cmp_ge_u32 s{sP[p]}, {OOB}\ns_cselect_b32 s{sB}, {OOB}, s{sB}")
                e(f"s_add_u32 s{sA}, s{sA}, s{sB}\ns_add_u32 s{sA}, s{sA}, {WS_A}")
                k.vm(f"buffer_store_dwordx4 v[{a}:{a+3}], v{vSh}, {srd(SWS)}, s{sA} offen sc1", f"S{p}")
                k.vm(f"buffer_store_dwordx4 v[{a+4}:{a+7}], v{vSh}, {srd(SWS)}, s{sA} offen offset:512 sc1", f"S{p}")
        return [f]
    def run(items):
        for it in items:
            if callable(it): it()
            else: e(it)
    def place(post, items, start, rate=(2, 2, 6, 6)):
        n = start; i = 0
        while i < len(items):
            r = rate[n % 4]
            post.setdefault(n, []).extend(items[i:i + r]); i += r; n += 1
        return n

    vQ1, vQ2 = 36, 40
    def kv_issue():
        e(f"v_lshlrev_b32 v1, 4, v0\ns_mul_i32 s{sD}, s{sAP}, {5*32768}\ns_lshl_b32 s{sC}, s{sRA}, 11\ns_add_u32 s{sD}, s{sD}, s{sC}\ns_add_u32 s{sD}, s{sD}, {WS_K - 4096}")
        for i in range(4):
            e(f"s_add_u32 s{sA}, s{sW}, {8*i}\ns_mul_i32 s{sB}, s{sA}, 43\ns_lshr_b32 s{sB}, s{sB}, 8\ns_mul_i32 s{sE}, s{sB}, 6\ns_sub_u32 s{sE}, s{sA}, s{sE}")
            e(f"s_lshl_b32 s{sB}, s{sB}, 15\ns_lshl_b32 s{sE}, s{sE}, 10\ns_add_u32 s{sB}, s{sB}, s{sE}\ns_add_u32 s{sB}, s{sB}, s{sD}")
            e(f"s_add_u32 s{sE}, s{sE}, s{sC}\ns_cmp_lt_u32 s{sE}, 4096\ns_cselect_b32 s{sB}, {OOB}, s{sB}\ns_cmp_ge_u32 s{sA}, 30\ns_cselect_b32 s{sB}, {OOB}, s{sB}")
            e(f"s_add_u32 m0, s{sW1K}, {8192*i}\ns_nop 0")
            k.vm(f"buffer_load_dwordx4 v1, {srd(SWS)}, s{sB} offen sc1 lds", "KV")
        e(f"s_mul_i32 s{sD}, s{sRA}, {8*20480}\ns_mul_i32 s{sC}, s{sAP}, 640\ns_add_u32 s{sD}, s{sD}, s{sC}\ns_add_u32 s{sD}, s{sD}, {WS_V - 16*20480}")
        e(f"s_lshl_b32 s{sC}, s{sRA}, 4\ns_sub_i32 s{sC}, 32, s{sC}\ns_lshl_b32 s{sA}, s{sW}, 6\nv_add_u32 v2, s{sA}, v0\ns_movk_i32 s{sB}, 9600\nv_mov_b32 v8, {OOB}")
        for i in range(4):
            e(f"v_mul_u32_u24 v5, 1639, v2\nv_lshrrev_b32 v5, 16, v5\nv_lshlrev_b32 v6, 4, v2\nv_mad_u32_u24 v6, v5, s{sB}, v6")
            e(f"v_cmp_gt_i32 vcc, s{sC}, v5\nv_cmp_lt_u32 s[{sMK}:{sMK+1}], 47, v5\ns_or_b64 vcc, vcc, s[{sMK}:{sMK+1}]\nv_cndmask_b32 v6, v6, v8, vcc")
            e(f"s_add_u32 m0, s{sW1K}, {32768 + 8192*i}\nv_add_u32 v2, 512, v2")
            k.vm(f"buffer_load_dwordx4 v6, {srd(SWS)}, s{sD} offen sc1 lds", "KV")
        e(f"v_and_b32 v5, 31, v0\nv_lshrrev_b32 v6, 5, v0\nv_lshlrev_b32 v5, 4, v5\nv_lshl_add_u32 v7, v6, 15, v5\nv_lshl_add_u32 v5, v6, 30, v5")
        e(f"s_mul_i32 s{sA}, s{sAP}, {5*32768}\ns_lshl_b32 s{sB}, s{sRA}, 11\ns_add_u32 s{sA}, s{sA}, s{sB}\ns_lshl_b32 s{sB}, s{sWR}, 9\ns_add_u32 s{sA}, s{sA}, s{sB}")
        e(f"s_mul_i32 s{sB}, s{sT}, {3*32768}\ns_add_u32 s{sB}, s{sB}, s{sA}\ns_lshl_b32 s{sC}, s{sT}, 3\ns_add_u32 s{sA}, s{sA}, s{sC}\ns_add_u32 s{sA}, s{sA}, {2*32768}")
        k.vm(f"buffer_load_dwordx4 v[{vQ1}:{vQ1+3}], v7, {srd(SWS)}, s{sB} offen sc1", "KV")
        k.vm(f"buffer_load_dwordx2 v[{vQ2}:{vQ2+1}], v5, {srd(SWS)}, s{sA} offen sc1", "KV")
    def poll_qkv():
        L = w0_begin()
        e(f"v_lshrrev_b32 v5, 4, v0\nv_and_b32 v6, 15, v0\nv_lshlrev_b32 v6, 2, v6\nv_add_u32 v5, s{sRA}, v5\nv_lshl_add_u32 v5, v5, 7, v6")
        e(f"v_add_u32 v6, {F_W - F_QKV + 256}, v6\nv_cmp_lt_u32 vcc, 47, v0\ns_nop 1\nv_cndmask_b32 v5, v5, v6, vcc")
        e(f"s_cmp_ge_u32 s{sRA}, 1\ns_cselect_b32 s{sA}, 0x7fff0000, 0\ns_cmp_ge_u32 s{sRA}, 2\ns_cselect_b32 s{sA}, 0x7fff7fff, s{sA}\ns_mov_b32 s{sB}, {F_QKV - 256}")
        poll(5, 7, f"s{sB}", f"s{sA}", "0xffff7fff")
        w0_end(L)

    def phase1(vor, lo, hi):
        kind = ["v" if vor else "qk"] * 2 + ["h", "h"]
        post = {}; pre = {}; aft = {}
        for slot in range(40):
            ops = colsum_ops(slot); h = len(ops) // 2
            post.setdefault(4 * slot, []).extend(ops[:h]); post.setdefault(4 * slot + 1, []).extend(ops[h:])
        for p in range(4):
            post[40 * p + 37].append(colsum_write)
            if p < 3:
                aft.setdefault(10 * p + 10, []).append(lambda: k.lg(f"ds_read_b128 v[{vT4}:{vT4+3}], v{vEC}", "ECr"))
                place(post, cs_build(), 40 * p + 39, (6, 6, 6, 6))
        S0, S1, Q0, Q1 = vSTAT, vSTAT + 4, vSTAT + 8, vSTAT + 12
        fin = [f"v_add_f32 v{S0}, v{S0}, v{S1}"] + [f"v_add_f32 v{Q0+i}, v{Q0+i}, v{Q1+i}" for i in range(4)]
        for i, m in ((1, 0x22222222), (2, 0x44444444), (3, 0x88888888)):
            fin += [f"s_mov_b32 s{sMK+2}, {hex(m)}\ns_mov_b32 s{sMK+3}, {hex(m)}", f"v_cndmask_b32 v{Q0}, v{Q0}, v{Q0+i}, s[{sMK+2}:{sMK+3}]"]
        fin += [f"v_mov_b32 v{S1}, v{S0}", f"v_mov_b32 v{Q1}, v{Q0}", f"v_and_b32 v{Q1+1}, 31, v0\nv_lshlrev_b32 v{Q1+1}, 3, v{Q1+1}",
                f"v_permlane32_swap_b32 v{S1}, v{S0}", f"v_permlane32_swap_b32 v{Q1}, v{Q0}",
                f"v_add_f32 v{S0}, v{S0}, v{S1}", f"v_add_f32 v{S0+1}, v{Q0}, v{Q1}",
                f"s_lshl_b32 s{sA}, s{sW}, 8\ns_add_u32 s{sA}, s{sA}, {EX}\nv_add_u32 v{Q1+2}, s{sA}, v{Q1+1}\ns_xor_b32 s{sA}, s{sA}, 1024\nv_add_u32 v{Q1+1}, s{sA}, v{Q1+1}",
                lambda: k.lg(f"ds_write_b64 v{Q1+2}, v[{S0}:{S0+1}]", "EXw")]
        post[40].extend(fin[:8]); post[41].extend(fin[8:])
        aft.setdefault(11, []).append(lambda: k.lg(f"ds_read_b64 v[{S1}:{S1+1}], v{Q1+1}", "EXr"))
        c_q = math.log2(math.e) / math.sqrt(20.0)
        import struct
        f2h = lambda x: hex(struct.unpack("<I", struct.pack("<f", x))[0])
        st2 = [lambda: k.wait(lg="EXr"), f"v_add_f32 v{S0}, v{S0}, v{S1}", f"v_add_f32 v{S0+1}, v{S0+1}, v{S1+1}",
               f"v_mul_f32 v{S0}, {f2h(1/640)}, v{S0}", f"v_mul_f32 v{S0+1}, {f2h(1/640)}, v{S0+1}",
               f"v_fma_f32 v{S0+1}, -v{S0}, v{S0}, v{S0+1}", f"v_max_f32 v{S0+1}, 0, v{S0+1}", f"v_add_f32 v{S0+1}, {f2h(1e-5)}, v{S0+1}",
               f"v_rsq_f32 v{vRS}, v{S0+1}"] + split_hilo(S0, S0 + 2, vMF, True)
        if vor:
            st2 += [f"v_and_b32 v{vU}, 31, v0\ns_lshl_b32 s{sA}, s{sW}, 7\ns_add_u32 s{sA}, s{sA}, {RS}\nv_lshl_add_u32 v{vU}, v{vU}, 2, s{sA}",
                    lambda: k.lg(f"ds_write_b32 v{vU}, v{vRS}", "RSw"),
                    f"v_lshrrev_b32 v{vU+1}, 5, v0\nv_lshl_add_u32 v{vU+1}, v{vU+1}, 4, s{sA}"]
            st2 += [lambda j=j: k.lg(f"ds_read_b128 v[{vSTAT+4*j}:{vSTAT+4*j+3}], v{vU+1} offset:{32*j}", "RSr") for j in range(4)]
            st2 += [f"v_and_b32 v{vU}, 31, v0\nv_lshrrev_b32 v{vU+1}, 5, v0\nv_mul_u32_u24 v{vU+1}, 640, v{vU+1}\nv_add_u32 v{vU}, v{vU}, v{vU+1}",
                    f"s_lshl_b32 s{sA}, s{sRB}, 2\ns_add_u32 s{sA}, s{sA}, s{sWR}\ns_mul_i32 s{sA}, s{sA}, 40960\nv_lshl_add_u32 v{vSt}, v{vU}, 4, s{sA}"]
        else:
            st2 += [f"s_cmp_lt_u32 s{sCB}, 5\ns_cselect_b32 s{sA}, {f2h(c_q)}, 1.0\nv_mul_f32 v{vRQ}, s{sA}, v{vRS}",
                    f"v_and_b32 v{vU}, 31, v0\nv_lshrrev_b32 v{vU+1}, 5, v0\nv_lshlrev_b32 v{vU+1}, 15, v{vU+1}\nv_lshl_add_u32 v{vU}, v{vU}, 4, v{vU+1}",
                    f"s_lshl_b32 s{sA}, s{sRB}, 2\ns_add_u32 s{sA}, s{sA}, s{sWR}\ns_lshl_b32 s{sA}, s{sA}, 9\nv_add_u32 v{vSt}, s{sA}, v{vU}"]
        post.setdefault(43, []).extend(st2[:14]); post.setdefault(46, []).extend(st2[14:]); post.setdefault(47, []).append(corr(0, vor))
        ep0 = ([lambda: k.wait(lg="RSr")] if vor else []) + epi_valu(0, kind[0]) + epi_stores(0, kind[0])
        place(post, ep0, 50)
        post.setdefault(81, []).append(corr(1, vor)); place(post, epi_valu(1, kind[1]) + epi_stores(1, kind[1]), 84, (4, 4, 6, 6))
        post.setdefault(121, []).append(corr(2, False)); place(post, epi_valu(2, "h"), 124)
        aft.setdefault(14, []).append(lambda: (e(f"v_mov_b32 v1, 0"), k.vm(f"buffer_load_dword v2, v1, {srd(SDBG)}, 0 offen sc1", "NON")))
        aft.setdefault(26, []).append(lambda: (k.wait(vm="NON"), get_nonce(2, 1)))
        def qflag():
            L = w0_begin()
            e(f"s_lshl_b32 s{sA}, s{sRB}, 5\ns_add_u32 s{sA}, s{sA}, s{sCB}\ns_lshl_b32 s{sA}, s{sA}, 2\ns_add_u32 s{sA}, s{sA}, {F_QKV}")
            flag_store(1, 2, sA); w0_end(L)
        aft.setdefault(cfg.FQ, []).append(qflag)
        if cfg.stop != "p1":
            pre.setdefault(cfg.PQ, []).append(poll_qkv)
            aft.setdefault(cfg.PQ, []).append(kv_issue)
        aft.setdefault(cfg.PQ, []).extend(epi_stores(2, "h"))
        def barrier(i):
            nxt = [b for b in BAR if b > i]; upto = nxt[0] if nxt else 40
            tags = [f"W{n}" for n in range(i, upto)] + [f"X{i}"]
            if i == cfg.FQ: tags += ["S0", "S1"]
            run(pre.get(i, []))
            k.wait(vm=tags, lg_all=True); e("s_barrier")
            if 1 <= i <= 6: dma_x(i + 3)
            if 1 <= i <= 10: dma_w(i + 7)
            if i == 10:
                for n in range(18, 26): dma_w(n)
            if i > 10:
                prv = [b for b in BAR if b < i][-1]
                for f in range(prv, i):
                    if f + 16 < 40: dma_w(f + 16)
            run(aft.get(i, []))
        if lo == 0:
            barrier(0); reads(0); reads(1)
        for n in range(lo, hi):
            if n % 40 == 0 and n > 0: stamp()
            if (n + 2) % 4 == 0 and (n + 2) // 4 in BAR: barrier((n + 2) // 4)
            reads(n + 2)
            k.wait(lg=f"F{n}")
            p = n // 40; a = acc(p); x = vX + 4 * (n % 40); w = wf(n)
            A, B = (x, w) if (vor and p < 2) else (w, x)
            C = "0" if n % 40 == 0 else f"v[{a}:{a+15}]"
            e(f"v_mfma_f32_32x32x16_bf16 v[{a}:{a+15}], v[{A}:{A+3}], v[{B}:{B+3}], {C}")
            if n < 40:
                L = k.label("Lst")
                e(f"{'s_cbranch_vccz' if n % 2 == 0 else 's_cbranch_vccnz'} {L}"); k.opt = True
                e(f"v_mfma_f32_4x4x4_16b_bf16 v[{S0}:{S0+3}], v[{vONE}:{vONE+1}], v[{x}:{x+1}], v[{S0}:{S0+3}]")
                e(f"v_mfma_f32_4x4x4_16b_bf16 v[{Q0}:{Q0+3}], v[{x}:{x+1}], v[{x}:{x+1}], v[{Q0}:{Q0+3}]")
                e(f"v_mfma_f32_4x4x4_16b_bf16 v[{S1}:{S1+3}], v[{vONE}:{vONE+1}], v[{x+2}:{x+3}], v[{S1}:{S1+3}]")
                e(f"v_mfma_f32_4x4x4_16b_bf16 v[{Q1}:{Q1+3}], v[{x+2}:{x+3}], v[{x+2}:{x+3}], v[{Q1}:{Q1+3}]")
                k.opt = False; e(f"{L}:")
            run(post.get(n, []))
    JOIN = 96
    s0 = nst[0]
    phase1(False, 0, JOIN)
    st_join = k.state(); s1 = nst[0]
    e("L_join:")
    phase1(False, JOIN, 160)
    stamp()
    k.wait(lg_all=True); e("s_barrier")
    k.lg(f"ds_read_b128 v[{vT4}:{vT4+3}], v{vEC}", "ECr")
    run(cs_build()); e(corr(3, False)); run(epi_valu(3, "h")); run(epi_stores(3, "h"))
    e("L_att:")
    st_att = k.state()
    if cfg.stop == "p1":
        e("s_branch L_fin")
    else:
        attention(k, cfg, stamp, poll, flag_store, w0_begin, w0_end, run)
    e("L_fin:")
    if cfg.stamps:
        stamp()
        e(f"s_waitcnt lgkmcnt(0)\ns_lshl_b32 s{sA}, s2, 3\ns_add_u32 s{sA}, s{sA}, s{sW}\ns_lshl_b32 s{sA}, s{sA}, 6\ns_add_u32 s{sA}, s{sA}, {WS_T}\nv_mov_b32 v1, 0\ns_mov_b64 exec, 1")
        for i in range(15):
            e(f"v_mov_b32 v2, s{sST+2*i}\nbuffer_store_dword v2, v1, {srd(SWS)}, s{sA} offen offset:{4*i}")
        e(f"s_memrealtime s[{sST}:{sST+1}]\ns_waitcnt lgkmcnt(0)\nv_mov_b32 v2, s{sST}\nbuffer_store_dword v2, v1, {srd(SWS)}, s{sA} offen offset:60")
    e("s_endpgm")
    e("L_vpath:")
    k.set_state(st_p1); nst[0] = s0
    phase1(True, 0, JOIN)
    assert k.state() == st_join, (k.state(), st_join)
    e("s_branch L_join")
    e("L_service:")
    k.set_state(st_entry)
    service(k, cfg, get_nonce, flag_store, w0_begin, w0_end)
    if cfg.stop != "p1":
        poll_qkv(); e("s_barrier"); kv_issue()
        tail = st_att[0][[i for i, t in enumerate(st_att[0]) if t == "KV"][-1] + 1:]
        e(f"s_mov_b32 s{sA}, {OOB}\nv_mov_b32 v1, 0")
        for t in tail: e(f"buffer_store_dword v1, v1, {srd(SWS)}, s{sA} offen")
    e("s_branch L_att")
    e("L_end:\ns_endpgm")
    body, npad = k.text(verbose=getattr(cfg, "verbose", False))
    head = f"; fused LayerNorm + sliding-window attention + ReLU FFN gate, one persistent launch (generated by gen/gen.py)\n; @launch grid=(256,1,1) block=(512,1,1) lds=163840\n"
    head += f'.amdgcn_target "amdgcn-amd-amdhsa--gfx950"\n.text\n.globl {NAME}\n.p2align 8\n.type {NAME},@function\n{NAME}:\n'
    tail = f'''.section .rodata,"a"
.p2align 6
.amdhsa_kernel {NAME}
  .amdhsa_next_free_vgpr 256
  .amdhsa_next_free_sgpr 102
  .amdhsa_accum_offset 256
  .amdhsa_group_segment_fixed_size 0
  .amdhsa_kernarg_size 72
  .amdhsa_user_sgpr_count 2
  .amdhsa_user_sgpr_kernarg_segment_ptr 1
  .amdhsa_system_sgpr_workgroup_id_x 1
.end_amdhsa_kernel
'''
    return head + body + tail, npad

def service(k, cfg, get_nonce, flag_store, w0_begin, w0_end):
    e = k.e
    Ls = k.label("Lnn")
    e(f"s_or_b32 s{sA}, s{sRB}, s{sW}\ns_cmp_lg_u32 s{sA}, 0\ns_cbranch_scc1 {Ls}"); k.opt = True
    e(f"v_lshrrev_b32 v1, 2, v0\nv_and_b32 v2, 3, v0\nv_lshlrev_b32 v2, 4, v2\nv_lshl_add_u32 v1, v1, 7, v2\nv_lshlrev_b32 v3, 4, v0")
    e(f"s_mov_b32 s{sA}, {F_QKV}\nbuffer_load_dwordx4 v[8:11], v1, {srd(SWS)}, s{sA} offen sc1\nbuffer_load_dwordx4 v[12:15], v1, {srd(SWS)}, s{sA} offen offset:2048 sc1")
    e(f"s_mov_b32 s{sA}, {F_W}\nbuffer_load_dwordx4 v[16:19], v2, {srd(SWS)}, s{sA} offen sc1")
    for i in range(8): e(f"s_mov_b32 s{sA}, {F_H + 1024*i}\nbuffer_load_dwordx4 v[{20+4*i}:{23+4*i}], v3, {srd(SWS)}, s{sA} offen sc1")
    Lc = k.label("Lnc")
    e(f"s_mov_b32 s{sNON}, 0\ns_waitcnt vmcnt(0)\n{Lc}:\ns_add_u32 s{sNON}, s{sNON}, 1\ns_mov_b64 s[{sMK}:{sMK+1}], 0")
    for r in range(8, 52): e(f"v_cmp_eq_u32 vcc, s{sNON}, v{r}\ns_nop 0\ns_or_b64 s[{sMK}:{sMK+1}], s[{sMK}:{sMK+1}], vcc")
    e(f"s_cmp_lg_u64 s[{sMK}:{sMK+1}], 0\ns_cbranch_scc1 {Lc}")
    e(f"v_mov_b32 v1, s{sNON}\nv_mov_b32 v2, 0\ns_mov_b64 exec, 1\nbuffer_store_dword v1, v2, {srd(SDBG)}, 0 offen sc1\ns_mov_b64 exec, -1")
    k.opt = False; e(f"{Ls}:")
    vR, vCk = 8, 13
    e(f"s_lshl_b32 s{sA}, s{sW}, 6\nv_add_u32 v1, s{sA}, v0")
    for i in range(5):
        e(f"v_mul_u32_u24 v2, 52429, v1\nv_lshrrev_b32 v{vR+i}, 22, v2\nv_mul_u32_u24 v2, 80, v{vR+i}\nv_sub_u32 v2, v1, v2")
        e(f"v_bfe_u32 v3, v{vR+i}, 3, 1\nv_and_b32 v4, 3, v{vR+i}\nv_lshl_add_u32 v3, v3, 2, v4\nv_lshlrev_b32 v3, 1, v3\nv_xor_b32 v2, v2, v3\nv_lshlrev_b32 v{vCk+i}, 4, v2\nv_add_u32 v1, 512, v1")
    def issue(jj):
        e(f"s_add_u32 s{sA}, s{sRB}, {16*jj}")
        e(f"s_cmp_lt_u32 s{sA}, 54\ns_cselect_b32 s{SX}, s{SW2}, s{SWO}\ns_cselect_b32 s{SX+1}, s{SW2+1}, s{SWO+1}\ns_cselect_b32 s{SX+2}, s{SW2+2}, s{SWO+2}")
        e(f"s_cselect_b32 s{sB}, 16, 20\ns_cselect_b32 s{sC}, 32, 40\ns_cselect_b32 s{sD}, 0, 54\ns_sub_u32 s{sD}, s{sA}, s{sD}\ns_mul_i32 s{sD}, s{sD}, s{sC}")
        e(f"s_sub_u32 s{sE}, s{sA}, 70\ns_mul_i32 s{sE}, s{sE}, 160\ns_add_u32 s{sE}, s{sE}, 16\ns_cmp_lt_u32 s{sA}, 70\ns_cselect_b32 s{sD}, s{sD}, s{sE}")
        e(f"s_cselect_b32 s{sB}, s{sB}, 80\ns_cselect_b32 s{sC}, 4, 40\ns_cselect_b32 s{sE}, 8, 20\ns_mul_i32 s{sD}, s{sD}, 1280\ns_cmp_lt_u32 s{sA}, 74\ns_cselect_b32 s{sD}, s{sD}, {OOB}")
        for i in range(5):
            e(f"v_lshrrev_b32 v1, 4, v{vR+i}\nv_mul_u32_u24 v1, s{sB}, v1\nv_bfe_u32 v2, v{vR+i}, 3, 1\nv_mad_u32_u24 v1, v2, s{sC}, v1\nv_bfe_u32 v2, v{vR+i}, 2, 1\nv_mad_u32_u24 v1, v2, s{sE}, v1")
            e(f"v_and_b32 v2, 3, v{vR+i}\nv_add_u32 v1, v1, v2\nv_mul_u32_u24 v1, 1280, v1\nv_add_u32 v1, v1, v{vCk+i}\ns_add_u32 m0, s{sW1K}, {(jj % 3) * 40960 + 8192*i}\ns_nop 0")
            k.vm(f"buffer_load_dwordx4 v1, {srd(SX)}, s{sD} offen lds", f"J{jj}")
    for jj in range(3): issue(jj)
    vA = 20
    e(f"v_lshrrev_b32 v1, 4, v0\nv_bfe_u32 v2, v0, 2, 2\nv_lshl_add_u32 v3, v1, 3, v2\nv_mul_u32_u24 v3, 1280, v3\nv_and_b32 v4, 1, v0\nv_lshl_add_u32 v3, v4, 3, v3")
    e(f"v_and_b32 v1, 1, v1\nv_lshl_add_u32 v1, v1, 2, v2\nv_lshlrev_b32 v1, 1, v1\nv_bfe_u32 v2, v0, 1, 1\ns_mul_i32 s{sA}, s{sW}, 10")
    for ct in range(5):
        e(f"s_add_u32 s{sB}, s{sA}, {2*ct}\nv_add_u32 v4, s{sB}, v2\nv_xor_b32 v4, v4, v1\nv_lshl_add_u32 v{vA+ct}, v4, 4, v3")
    for ct in range(5): e(f"v_add_u32 v{vA+5+ct}, 81920, v{vA+ct}")
    e(f"v_lshlrev_b32 v30, 4, v0")
    vF = 32
    for jj in range(5):
        k.wait(vm=f"J{jj}"); e("s_barrier")
        b = jj % 3
        for ct in range(5):
            for h in range(2):
                r, o = (vA + ct, b * 40960) if b < 2 else (vA + 5 + ct, 0)
                k.lg(f"ds_read_b64_tr_b16 v[{vF+4*ct+2*h}:{vF+4*ct+2*h+1}], v{r} offset:{o + h*5120}", "R")
        k.wait(lg_all=True)
        if jj + 3 < 5:
            e("s_barrier"); issue(jj + 3)
        e(f"s_mul_i32 s{sA}, s{sW}, 74\ns_add_u32 s{sB}, s{sRB}, {16*jj}\ns_add_u32 s{sA}, s{sA}, s{sB}\ns_mul_i32 s{sA}, s{sA}, 5120\ns_add_u32 s{sA}, s{sA}, {WS_B}\ns_cmp_lt_u32 s{sB}, 74\ns_cselect_b32 s{sA}, s{sA}, {OOB}\ns_add_u32 s{sB}, s{sA}, 4096")
        for ct in range(5):
            so, io = (sA, ct * 1024) if ct < 4 else (sB, 0)
            k.vm(f"buffer_store_dwordx4 v[{vF+4*ct}:{vF+4*ct+3}], v30, {srd(SWS)}, s{so} offen offset:{io} sc1", "BS")
    e(f"s_load_dwordx2 s[{SX}:{SX+1}], s[0:1], 0\ns_mov_b32 s{SX+2}, 2621440")
    e(f"v_mov_b32 v18, 0"); k.vm(f"buffer_load_dword v19, v18, {srd(SDBG)}, 0 offen sc1", "NON")
    k.wait(vm_all=True); e("s_waitcnt lgkmcnt(0)")
    get_nonce(19, 18)
    e("s_barrier")
    L = w0_begin()
    e(f"s_lshl_b32 s{sA}, s{sRB}, 2\ns_add_u32 s{sA}, s{sA}, {F_W}")
    flag_store(1, 2, sA); w0_end(L)

from phase23 import attention

if __name__ == "__main__":
    cfg = Cfg()
    out = "recurrent_scan__sliding_block__dense_activation_relu__prompt.s"
    for a in sys.argv[1:]:
        kk, v = a.split("=")
        if kk == "out": out = v
        else: setattr(cfg, kk, None if v == "None" else (int(v) if v.lstrip("-").isdigit() else v))
    txt, npad = build(cfg)
    open(out, "w").write(txt)
    print("wrote", out, "lines", txt.count("\n"), "pads", npad)
```
